```python
import torch

def _softmax(x, axis=-1):
    return torch.softmax(x, dim=axis)

def _gelu(x):
    return torch.nn.functional.gelu(x, approximate='tanh')

def _silu(x):
    return torch.nn.functional.silu(x)

def _sigmoid(x):
    return torch.sigmoid(x)

def _layernorm(x, axis=-1, eps=1e-05):
    m = x.mean(dim=axis, keepdim=True)
    v = x.var(dim=axis, keepdim=True, unbiased=False)
    return (x - m) / torch.sqrt(v + eps)

def _scatter_add(tgt, idx, src, axis=0):
    return tgt.clone().index_add_(axis, idx, src)

def _segment_sum(src, seg, n):
    out = torch.zeros((n,) + src.shape[1:], dtype=src.dtype)
    return out.index_add_(0, seg, src)

def _pad(x, pw):
    flat = tuple((v for pair in reversed(pw) for v in pair))
    return torch.nn.functional.pad(x, flat)
kernel_name = 'standalone__conformer_family_zipformer__speech'

def setup_inputs():

    _w = lambda a: (lambda t: t.to(torch.bfloat16) if t.is_floating_point() else t)(torch.as_tensor(a))
    B, T, D, K, H = (2, 4000, 256, 5, 4)
    sc = 0.1
    return {'x': _w((lambda *s: torch.randn(*s, dtype=torch.bfloat16) * 0.8)(B, T, D)), 'w_ff1a': _w((lambda *s: torch.randn(*s, dtype=torch.bfloat16) * 0.8)(D, 4 * D) * sc), 'w_ff1b': _w((lambda *s: torch.randn(*s, dtype=torch.bfloat16) * 0.8)(4 * D, D) * sc), 'w_qkv': _w((lambda *s: torch.randn(*s, dtype=torch.bfloat16) * 0.8)(D, 3 * D) * sc), 'w_o': _w((lambda *s: torch.randn(*s, dtype=torch.bfloat16) * 1.6)(D, D) * sc), 'w_pw1': _w((lambda *s: torch.randn(*s, dtype=torch.bfloat16) * 1.6)(D, 2 * D) * sc), 'dw': _w((lambda *s: torch.randn(*s, dtype=torch.bfloat16) * 0.4)(K, D)), 'w_pw2': _w((lambda *s: torch.randn(*s, dtype=torch.bfloat16) * 0.4)(D, D) * sc), 'w_ff2a': _w((lambda *s: torch.randn(*s, dtype=torch.bfloat16) * 0.8)(D, 4 * D) * sc), 'w_ff2b': _w((lambda *s: torch.randn(*s, dtype=torch.bfloat16) * 0.8)(4 * D, D) * sc)}

def reference(x, w_ff1a, w_ff1b, w_qkv, w_o, w_pw1, dw, w_pw2, w_ff2a, w_ff2b):
    B, T, D = x.shape
    K = dw.shape[0]
    H = 4
    Dh = D // H
    h = _layernorm(x, axis=-1)
    h = _silu(h @ w_ff1a) @ w_ff1b
    x = x + 0.5 * h
    h = _layernorm(x, axis=-1)
    qkv = h @ w_qkv
    q = (lambda x, *d: x.permute(*d))(qkv[..., :D].reshape(B, T, H, Dh), 0, 2, 1, 3)
    k = (lambda x, *d: x.permute(*d))(qkv[..., D:2 * D].reshape(B, T, H, Dh), 0, 2, 1, 3)
    v = (lambda x, *d: x.permute(*d))(qkv[..., 2 * D:].reshape(B, T, H, Dh), 0, 2, 1, 3)
    scale = Dh ** (-0.5)
    scores = torch.einsum('bhqd,bhkd->bhqk', q, k) * scale
    p = _softmax(scores, axis=-1)
    att = torch.einsum('bhqk,bhkd->bhqd', p, v)
    att = (lambda x, *d: x.permute(*d))(att, 0, 2, 1, 3).reshape(B, T, D)
    x = x + att @ w_o
    h = _layernorm(x, axis=-1)
    h = h @ w_pw1
    a, b = (h[..., :D].clone(), h[..., D:].clone())
    h = a * _sigmoid(b)
    pad = K // 2
    hp = _pad(h, ((0, 0), (pad, pad), (0, 0)))
    c = torch.zeros_like(h)
    for i in range(K):
        c = c + hp[:, i:i + T, :] * dw[i][None, None, :]
    x = x + _silu(c) @ w_pw2
    h = _layernorm(x, axis=-1)
    h = _silu(h @ w_ff2a) @ w_ff2b
    x = x + 0.5 * h
    return _layernorm(x, axis=-1)
```

```python
import re

TRANS = ('v_exp_f32', 'v_rcp_f32', 'v_rsq_f32', 'v_sqrt_f32', 'v_log_f32', 'v_sin_f32', 'v_cos_f32')


def parse_reg(tok):
    tok = tok.strip()
    if tok.startswith('-'):
        tok = tok[1:]
    m = re.match(r'abs\((.*)\)$', tok)
    if m:
        tok = m.group(1)
    m = re.match(r'([vs])(\d+)$', tok)
    if m:
        return [(m.group(1), int(m.group(2)))]
    m = re.match(r'([vs])\[(\d+):(\d+)\]$', tok)
    if m:
        return [(m.group(1), i) for i in range(int(m.group(2)), int(m.group(3)) + 1)]
    if tok in ('vcc', 'exec', 'm0', 'vcc_lo', 'vcc_hi'):
        return [('x', 'vcc' if tok.startswith('vcc') else tok)]
    return []


def vr(b, n=1):
    return f'v{b}' if n == 1 else f'v[{b}:{b + n - 1}]'


def sr(b, n=1):
    return f's{b}' if n == 1 else f's[{b}:{b + n - 1}]'


class Asm:
    def __init__(self):
        self.out = []
        self.reset_state()

    def reset_state(self):
        self.pos = 0
        self.valu_w = {}
        self.trans_w = {}
        self.mfma_w = {}
        self.mfma_c = {}
        self.store_r = {}
        self.sg_valu_w = {}
        self.m0_w = -100
        self.vm = []
        self.lgkm = []

    def snapshot(self):
        import copy
        return copy.deepcopy({k: v for k, v in self.__dict__.items() if k != 'out'})

    def restore(self, snap):
        import copy
        for k, v in copy.deepcopy(snap).items():
            setattr(self, k, v)

    def raw(self, text):
        self.out.append('    ' + text)

    def label(self, name):
        self.out.append(f'{name}:')

    def comment(self, text):
        self.out.append(f'    ; {text}')

    def _nop(self, n):
        while n > 0:
            k = min(n, 16)
            self.raw(f's_nop {k - 1}')
            self.pos += k
            n -= k

    def waitcnt(self, vm=None, lgkm=None):
        parts = []
        if vm is not None:
            vm = min(vm, 63)
            parts.append(f'vmcnt({vm})')
            if len(self.vm) > vm:
                self.vm = self.vm[len(self.vm) - vm:] if vm > 0 else []
        if lgkm is not None:
            lgkm = min(lgkm, 15)
            parts.append(f'lgkmcnt({lgkm})')
            if len(self.lgkm) > lgkm:
                self.lgkm = self.lgkm[len(self.lgkm) - lgkm:] if lgkm > 0 else []
        self.raw('s_waitcnt ' + ' '.join(parts))
        self.pos += 1

    def barrier(self):
        self.raw('s_barrier')
        self.pos += 1

    def __call__(self, text):
        text = text.strip()
        mn, _, rest = text.partition(' ')
        ops = []
        depth = 0
        cur = ''
        for ch in rest:
            if ch == '[' or ch == '(':
                depth += 1
            if ch == ']' or ch == ')':
                depth -= 1
            if ch == ',' and depth == 0:
                ops.append(cur.strip())
                cur = ''
            else:
                cur += ch
        if cur.strip():
            ops.append(cur.strip())
        mods = ''
        if ops:
            last = ops[-1].split(' ', 1)
            ops[-1] = last[0]
            if len(last) > 1:
                mods = last[1]
        regs = [parse_reg(o) for o in ops]
        W, R = [], []
        cls = None
        is_dpp = 'dpp' in mn or 'quad_perm' in mods or 'row_' in mods
        srcA = srcB = srcC = None
        if mn.startswith('v_mfma'):
            cls = 'mfma'
            W = regs[0]
            srcA, srcB, srcC = regs[1], regs[2], regs[3]
            R = srcA + srcB + srcC
        elif mn.startswith('v_cmp'):
            cls = 'valu'
            W = regs[0]
            R = sum(regs[1:], [])
            if mn.startswith('v_cmpx'):
                W = W + [('x', 'exec')]
        elif mn.startswith('v_permlane') and 'swap' in mn:
            cls = 'valu'
            W = regs[0] + regs[1]
            R = regs[0] + regs[1]
        elif mn.startswith('v_readfirstlane') or mn.startswith('v_readlane'):
            cls = 'valu'
            W = regs[0]
            R = sum(regs[1:], [])
        elif mn.startswith('v_add_co') or mn.startswith('v_sub_co') or mn.startswith('v_addc_co') or mn.startswith('v_subb_co'):
            cls = 'valu'
            W = regs[0] + regs[1]
            R = sum(regs[2:], [])
        elif mn.startswith('v_'):
            cls = 'trans' if mn.split('_e')[0] in TRANS else 'valu'
            W = regs[0]
            R = sum(regs[1:], [])
            if mn.startswith('v_fmac') or mn.startswith('v_pk_fmac') or mn.startswith('v_writelane'):
                R = R + regs[0]
            if mn.startswith('v_cndmask') and len(ops) == 3:
                R = R + [('x', 'vcc')]
        elif mn.startswith('buffer_load') or mn.startswith('global_load'):
            if re.search(r'\blds\b', mods) or 'lds' in mn:
                cls = 'vdma'
                R = sum(regs, []) + [('x', 'm0')]
            else:
                cls = 'vload'
                W = regs[0]
                R = sum(regs[1:], [])
        elif mn.startswith('buffer_store') or mn.startswith('global_store'):
            cls = 'vstore'
            R = sum(regs, [])
        elif mn.startswith('buffer_atomic') or mn.startswith('global_atomic'):
            cls = 'vstore'
            R = sum(regs, [])
        elif mn.startswith('ds_read') or mn.startswith('ds_bpermute') or mn.startswith('ds_permute') or mn.startswith('ds_swizzle'):
            cls = 'dsread'
            W = regs[0]
            R = sum(regs[1:], [])
        elif mn.startswith('ds_write'):
            cls = 'dswrite'
            R = sum(regs, [])
        elif mn.startswith('s_load'):
            cls = 'smem'
            W = regs[0]
            R = sum(regs[1:], [])
        elif mn.startswith('s_'):
            cls = 'salu'
            if mn.startswith('s_cmp') or mn.startswith('s_cbranch') or mn.startswith('s_branch') or mn in ('s_setprio', 's_endpgm', 's_sleep'):
                W = []
                R = sum(regs, [])
            else:
                W = regs[0] if regs else []
                R = sum(regs[1:], [])
                if 'saveexec' in mn:
                    W = W + [('x', 'exec')]
        else:
            raise ValueError('unknown instr ' + text)

        Wset, Rset = set(W), set(R)
        touched = Wset | Rset
        needvm = None
        for i, d in enumerate(self.vm):
            if d & touched:
                if cls in ('vload',) and not (d & Rset):
                    continue
                n = len(self.vm) - 1 - i
                needvm = n if needvm is None else min(needvm, n)
        needlg = None
        anysmem = any(s for _, s in self.lgkm)
        for i, (d, s) in enumerate(self.lgkm):
            if d & touched:
                n = 0 if anysmem else len(self.lgkm) - 1 - i
                needlg = n if needlg is None else min(needlg, n)
        if needvm is not None or needlg is not None:
            self.waitcnt(needvm, needlg)

        need = 0

        def req(prod_pos, ws):
            nonlocal need
            dist = self.pos - prod_pos - 1
            if ws - dist > need:
                need = ws - dist

        AB = {4: 8, 8: 12, 16: 20}
        CO = {4: 6, 8: 10, 16: 18}
        WARC = {4: 3, 8: 7, 16: 15}
        if cls == 'mfma':
            passes = 8 if '32x32' in mn else 4
            for r in R + W:
                if r in self.valu_w:
                    req(self.valu_w[r], 2)
            for r in srcA + srcB:
                if r in self.mfma_w:
                    p, ps, rng = self.mfma_w[r]
                    req(p, AB[ps])
            for r in srcC + W:
                if r in self.mfma_w:
                    p, ps, rng = self.mfma_w[r]
                    if rng == tuple(W) and tuple(srcC) == tuple(W) and ps == passes:
                        pass
                    else:
                        req(p, CO[ps])
            if ('x', 'exec') in self.sg_valu_w:
                req(self.sg_valu_w[('x', 'exec')], 4)
        elif cls in ('valu', 'trans'):
            for r in touched:
                if r in self.mfma_w:
                    p, ps, rng = self.mfma_w[r]
                    req(p, AB[ps])
            for r in Wset:
                if r in self.mfma_c:
                    p, ps = self.mfma_c[r]
                    req(p, WARC[ps])
                if r in self.store_r:
                    req(self.store_r[r], 2)
            for r in Rset:
                if r in self.trans_w:
                    req(self.trans_w[r], 1)
                if r[0] != 'v' and r in self.sg_valu_w:
                    req(self.sg_valu_w[r], 4 if mn.startswith('v_readlane') or mn.startswith('v_writelane') else 2)
            if mn.startswith('v_readfirstlane') or mn.startswith('v_readlane'):
                for r in Rset:
                    if r in self.valu_w:
                        req(self.valu_w[r], 1)
                if ('x', 'exec') in self.sg_valu_w:
                    req(self.sg_valu_w[('x', 'exec')], 4)
            if mn.startswith('v_permlane') or is_dpp:
                for r in touched:
                    if r in self.valu_w:
                        req(self.valu_w[r], 2)
                if ('x', 'exec') in self.sg_valu_w:
                    req(self.sg_valu_w[('x', 'exec')], 5)
        elif cls in ('vload', 'vstore', 'vdma', 'dsread', 'dswrite'):
            for r in touched:
                if r in self.mfma_w:
                    p, ps, rng = self.mfma_w[r]
                    req(p, AB[ps])
            for r in Wset:
                if r in self.mfma_c:
                    p, ps = self.mfma_c[r]
                    req(p, WARC[ps])
                if r in self.store_r:
                    req(self.store_r[r], 2)
            for r in Rset:
                if r[0] != 'v' and r in self.sg_valu_w:
                    req(self.sg_valu_w[r], 5)
            if cls == 'vdma':
                req(self.m0_w, 1)
        elif cls == 'salu' or cls == 'smem':
            for r in Rset:
                if r in self.sg_valu_w:
                    req(self.sg_valu_w[r], 1)
        if need > 0:
            self._nop(need)

        self.raw(text)
        p = self.pos
        self.pos += 1
        if cls in ('valu', 'trans'):
            for r in Wset:
                if r[0] == 'v':
                    self.valu_w[r] = p
                    self.mfma_w.pop(r, None)
                    if cls == 'trans':
                        self.trans_w[r] = p
                    else:
                        self.trans_w.pop(r, None)
                else:
                    self.sg_valu_w[r] = p
        elif cls == 'mfma':
            passes = 8 if '32x32' in mn else 4
            for r in W:
                self.mfma_w[r] = (p, passes, tuple(W))
                self.valu_w.pop(r, None)
                self.trans_w.pop(r, None)
            for r in srcC:
                self.mfma_c[r] = (p, passes)
        elif cls == 'vload':
            self.vm.append(set(W))
            for r in W:
                self.valu_w.pop(r, None); self.trans_w.pop(r, None); self.mfma_w.pop(r, None)
        elif cls == 'vdma':
            self.vm.append(set())
        elif cls == 'vstore':
            self.vm.append(set())
            if 'x3' in mn or 'x4' in mn:
                for r in regs[0]:
                    self.store_r[r] = p
        elif cls == 'dsread':
            self.lgkm.append((set(W), False))
            for r in W:
                self.valu_w.pop(r, None); self.trans_w.pop(r, None); self.mfma_w.pop(r, None)
        elif cls == 'dswrite':
            self.lgkm.append((set(), False))
        elif cls == 'smem':
            self.lgkm.append((set(W), True))
        elif cls == 'salu':
            for r in Wset:
                self.sg_valu_w.pop(r, None)
                if r == ('x', 'm0'):
                    self.m0_w = p
        if self.pos % 64 == 0:
            lim = self.pos - 40
            for d in (self.valu_w, self.trans_w, self.store_r, self.sg_valu_w):
                for k in [k for k, v in d.items() if v < lim]:
                    del d[k]
            for d in (self.mfma_w, self.mfma_c):
                for k in [k for k, v in d.items() if v[0] < lim]:
                    del d[k]

    def loop(self, label, body, tail):
        self.label(label)
        start = len(self.out)
        body()
        tail()
        first = self.out[start:]
        snap = self.snapshot()
        saved = self.out
        self.out = []
        body()
        tail()
        second = self.out
        self.out = saved
        self.restore(snap)
        if first != second:
            for a, b in zip(first, second):
                if a != b:
                    print('LOOP MISMATCH:', a, '|', b)
                    break
            raise RuntimeError('loop body not steady-state safe: ' + label)

    def text(self):
        return '\n'.join(self.out) + '\n'
```

```python
from asmlib import Asm, vr, sr

QF = 0x800000
KF = 0xC00000
VF = 0x1000000
ATT = 0x1400000
WS_BYTES = 0x10000000
KA_WS = 96
LDS_ATT = 49152

CSC = 0x3e38aa3b

V_L16 = 1
V_LRD = 2
V_T = 4
V_Q = 16
V_K = 32
V_V = 48
V_S = 64
V_O = 80
V_P = 112
V_M = 120
V_LS = 121
V_AL = 122
V_O2 = 128

S_WAVE, S_HF, S_J = 3, 4, 5
S_SRD = 12
S_KOFF = 16
S_KT = 17
S_BASEK = 18
S_M0 = 19
S_IT = 20
S_C = 21
S_T0, S_T1, S_T2 = 22, 23, 24
S_QT = 25
S_BH = 26
S_CUR = 27


def gen_k2(a):
    from gen import kernel_begin, kernel_end
    kernel_begin(a, 'k2_kernel')
    a('s_cmp_ge_u32 s2, 256')
    a('s_cbranch_scc1 L_exit_k2_kernel')
    a(f's_load_dwordx2 s[6:7], s[0:1], {KA_WS}')
    a(f'v_and_b32 v{V_T}, 63, v0')
    a(f'v_lshrrev_b32 v{V_T+1}, 6, v0')
    a(f'v_lshlrev_b32 v{V_L16}, 4, v{V_T}')
    a(f'v_readfirstlane_b32 s{S_WAVE}, v{V_T+1}')
    a(f's_lshr_b32 s{S_HF}, s{S_WAVE}, 2')
    a(f's_and_b32 s{S_J}, s{S_WAVE}, 3')
    a(f's_lshl_b32 s{S_T0}, s{S_HF}, 13')
    a(f'v_add_u32 v{V_LRD}, s{S_T0}, v{V_L16}')
    a(f's_lshl_b32 s{S_T1}, s{S_J}, 10')
    a(f's_add_u32 s{S_M0}, s{S_T0}, s{S_T1}')
    a(f's_and_b32 s{S_BH}, s2, 7')
    a(f's_lshr_b32 s{S_QT}, s2, 3')
    a(f's_lshl_b32 s{S_QT}, s{S_QT}, 2')
    a(f's_add_u32 s{S_QT}, s{S_QT}, s{S_J}')
    a(f's_mul_i32 s{S_T0}, s{S_BH}, {125 * 4096}')
    a(f's_add_u32 s{S_BASEK}, s{S_T0}, s{S_T1}')
    a(f's_add_u32 s{S_BASEK}, s{S_BASEK}, {KF}')
    a(f's_min_u32 s{S_T2}, s{S_QT}, 124')
    a(f's_lshl_b32 s{S_T2}, s{S_T2}, 12')
    a(f's_add_u32 s{S_T2}, s{S_T2}, s{S_T0}')
    a(f's_add_u32 s{S_T2}, s{S_T2}, {QF}')
    a(f's_mul_i32 s{S_KT}, s{S_HF}, 63')
    a(f's_mov_b32 s{S_CUR}, s{S_KT}')
    a(f's_mov_b32 s{S_C}, 0x{CSC:08x}')
    a.waitcnt(lgkm=0)
    a(f's_mov_b32 s{S_SRD}, s6')
    a(f's_and_b32 s{S_SRD+1}, s7, 0xffff')
    a(f's_mov_b32 s{S_SRD+2}, {WS_BYTES}')
    a(f's_mov_b32 s{S_SRD+3}, 0x00020000')
    for s in range(4):
        a(f'buffer_load_dwordx4 {vr(V_Q+4*s, 4)}, v{V_L16}, {sr(S_SRD, 4)}, s{S_T2} offen offset:{s*1024}')

    def dma(buf):
        a(f's_min_u32 s{S_T0}, s{S_KT}, 124')
        a(f's_lshl_b32 s{S_T0}, s{S_T0}, 12')
        a(f's_add_u32 s{S_T0}, s{S_T0}, s{S_BASEK}')
        a(f's_add_u32 s{S_T1}, s{S_T0}, {VF - KF}')
        a(f's_add_u32 m0, s{S_M0}, {buf * 16384}')
        a(f'buffer_load_dwordx4 v{V_L16}, {sr(S_SRD, 4)}, s{S_T0} offen lds')
        a(f's_add_u32 m0, s{S_M0}, {buf * 16384 + 4096}')
        a(f'buffer_load_dwordx4 v{V_L16}, {sr(S_SRD, 4)}, s{S_T1} offen lds')
        a(f's_add_u32 s{S_KT}, s{S_KT}, 1')

    dma(0)
    dma(1)
    for i in range(32):
        a(f'v_mov_b32 v{V_O+i}, 0')
    a(f'v_mov_b32 v{V_M}, 0xff800000')
    a(f'v_mov_b32 v{V_LS}, 0')
    a(f's_mov_b32 s{S_IT}, 0')
    a.waitcnt(vm=2)
    a.barrier()

    def compute(buf):
        T = V_T
        for s in range(4):
            a(f'ds_read_b128 {vr(V_K+4*s, 4)}, v{V_LRD} offset:{buf*16384 + s*1024}')
        for s in range(4):
            a(f'ds_read_b128 {vr(V_V+4*s, 4)}, v{V_LRD} offset:{buf*16384 + 4096 + s*1024}')
        for s in range(4):
            c = '0' if s == 0 else vr(V_S, 16)
            a(f'v_mfma_f32_32x32x16_bf16 {vr(V_S,16)}, {vr(V_K+4*s,4)}, {vr(V_Q+4*s,4)}, {c}')
        S = V_S
        a(f'v_max3_f32 v{T}, v{S}, v{S+1}, v{S+2}')
        a(f'v_max3_f32 v{T+1}, v{S+3}, v{S+4}, v{S+5}')
        a(f'v_max3_f32 v{T+2}, v{S+6}, v{S+7}, v{S+8}')
        a(f'v_max3_f32 v{T+3}, v{S+9}, v{S+10}, v{S+11}')
        a(f'v_max3_f32 v{T+4}, v{S+12}, v{S+13}, v{S+14}')
        a(f'v_max3_f32 v{T}, v{T}, v{T+1}, v{S+15}')
        a(f'v_max3_f32 v{T+2}, v{T+2}, v{T+3}, v{T+4}')
        a(f'v_max_f32 v{T}, v{T}, v{T+2}')
        a(f'v_mov_b32 v{T+1}, v{T}')
        a(f'v_permlane32_swap_b32 v{T}, v{T+1}')
        a(f'v_max_f32 v{T}, v{T}, v{T+1}')
        a(f'v_mul_f32 v{T}, s{S_C}, v{T}')
        a(f'v_max_f32 v{T}, v{T}, v{V_M}')
        a(f'v_sub_f32 v{V_AL}, v{V_M}, v{T}')
        a(f'v_exp_f32 v{V_AL}, v{V_AL}')
        a(f'v_mov_b32 v{V_M}, v{T}')
        for i in range(16):
            a(f'v_fma_f32 v{S+i}, v{S+i}, s{S_C}, -v{T}')
        for i in range(16):
            a(f'v_exp_f32 v{S+i}, v{S+i}')
        a(f'v_add_f32 v{T+1}, v{S}, v{S+1}')
        a(f'v_add_f32 v{T+2}, v{S+2}, v{S+3}')
        for i in range(4, 16, 2):
            a(f'v_add_f32 v{T+1}, v{T+1}, v{S+i}')
            a(f'v_add_f32 v{T+2}, v{T+2}, v{S+i+1}')
        a(f'v_add_f32 v{T+1}, v{T+1}, v{T+2}')
        a(f'v_fma_f32 v{V_LS}, v{V_LS}, v{V_AL}, v{T+1}')
        for i in range(8):
            a(f'v_cvt_pk_bf16_f32 v{V_P+i}, v{S+2*i}, v{S+2*i+1}')
        for i in range(32):
            a(f'v_mul_f32 v{V_O+i}, v{V_O+i}, v{V_AL}')
        for dt in range(2):
            for s in range(2):
                a(f'v_mfma_f32_32x32x16_bf16 {vr(V_O+16*dt,16)}, {vr(V_V+4*(2*dt+s),4)}, {vr(V_P+4*s,4)}, {vr(V_O+16*dt,16)}')

    def body():
        for sub in range(3):
            dma((sub + 2) % 3)
            if sub == 2:
                a(f's_cmp_eq_u32 s{S_CUR}, 125')
                a('s_cbranch_scc1 L_k2_skip')
            compute(sub)
            if sub == 2:
                a.label('L_k2_skip')
            a(f's_add_u32 s{S_CUR}, s{S_CUR}, 1')
            a.waitcnt(vm=2)
            a.barrier()

    def tail():
        a(f's_add_u32 s{S_IT}, s{S_IT}, 1')
        a(f's_cmp_lt_u32 s{S_IT}, 21')
        a('s_cbranch_scc1 L_k2_loop')

    a.loop('L_k2_loop', body, tail)
    a.waitcnt(vm=0)
    a.barrier()
    a(f's_mul_i32 s{S_T0}, s{S_J}, 9216')
    a(f'v_add_u32 v{V_T}, s{S_T0}, v{V_L16}')
    a(f'v_lshrrev_b32 v{V_T+1}, 1, v{V_L16}')
    a(f'v_add_u32 v{V_T+1}, s{S_T0}, v{V_T+1}')
    a(f's_cmp_eq_u32 s{S_HF}, 0')
    a('s_cbranch_scc1 L_k2_lo')
    for k in range(8):
        a(f'ds_write_b128 v{V_T}, {vr(V_O+4*k, 4)} offset:{k*1024}')
    a(f'ds_write_b64 v{V_T+1}, {vr(V_M, 2)} offset:8192')
    a.waitcnt(lgkm=0)
    a.barrier()
    a('s_branch L_exit_k2_kernel')
    a.label('L_k2_lo')
    a.barrier()
    for k in range(8):
        a(f'ds_read_b128 {vr(V_O2+4*k, 4)}, v{V_T} offset:{k*1024}')
    a(f'ds_read_b64 {vr(V_O2+32, 2)}, v{V_T+1} offset:8192')
    M2, L2 = V_O2 + 32, V_O2 + 33
    T = V_T + 2
    a(f'v_max_f32 v{T}, v{V_M}, v{M2}')
    a(f'v_sub_f32 v{T+1}, v{V_M}, v{T}')
    a(f'v_sub_f32 v{T+2}, v{M2}, v{T}')
    a(f'v_exp_f32 v{T+1}, v{T+1}')
    a(f'v_exp_f32 v{T+2}, v{T+2}')
    a(f'v_mul_f32 v{V_LS}, v{V_LS}, v{T+1}')
    a(f'v_fma_f32 v{V_LS}, v{L2}, v{T+2}, v{V_LS}')
    a(f'v_mov_b32 v{T+3}, v{V_LS}')
    a(f'v_permlane32_swap_b32 v{V_LS}, v{T+3}')
    a(f'v_add_f32 v{V_LS}, v{V_LS}, v{T+3}')
    a(f'v_rcp_f32 v{V_LS}, v{V_LS}')
    a(f'v_mul_f32 v{T+1}, v{T+1}, v{V_LS}')
    a(f'v_mul_f32 v{T+2}, v{T+2}, v{V_LS}')
    for i in range(32):
        a(f'v_mul_f32 v{V_O+i}, v{V_O+i}, v{T+1}')
    for i in range(32):
        a(f'v_fma_f32 v{V_O+i}, v{V_O2+i}, v{T+2}, v{V_O+i}')
    for i in range(16):
        a(f'v_cvt_pk_bf16_f32 v{V_O2+i}, v{V_O+2*i}, v{V_O+2*i+1}')
    a(f's_cmp_ge_u32 s{S_QT}, 125')
    a('s_cbranch_scc1 L_exit_k2_kernel')
    a(f's_lshr_b32 s{S_T0}, s{S_BH}, 2')
    a(f's_mul_i32 s{S_T0}, s{S_T0}, 125')
    a(f's_add_u32 s{S_T0}, s{S_T0}, s{S_QT}')
    a(f's_lshl_b32 s{S_T0}, s{S_T0}, 14')
    a(f's_and_b32 s{S_T1}, s{S_BH}, 3')
    a(f's_lshl_b32 s{S_T1}, s{S_T1}, 12')
    a(f's_add_u32 s{S_T0}, s{S_T0}, s{S_T1}')
    a(f's_add_u32 s{S_T0}, s{S_T0}, {ATT}')
    for k in range(4):
        a(f'buffer_store_dwordx4 {vr(V_O2+4*k, 4)}, v{V_L16}, {sr(S_SRD, 4)}, s{S_T0} offen offset:{k*1024}')
    kernel_end(a)
```

```python
import sys
from asmlib import Asm, vr, sr

NAME = 'standalone__conformer_family_zipformer__speech'

WK1, WK1_STRIDE = 0x000000, 176 * 1024
WK3, WK3_STRIDE = 0x160000, 48 * 1024
WK4, WK4_STRIDE = 0x1C0000, 144 * 1024
X1 = 0x400000
QF = 0x800000
KF = 0xC00000
VF = 0x1000000
ATT = 0x1400000
X2 = 0x1800000
GG = 0x1C00000
WS_BYTES = 0x10000000

KA_X, KA_FF1A, KA_FF1B, KA_QKV, KA_WO, KA_PW1, KA_DW, KA_PW2, KA_FF2A, KA_FF2B, KA_OUT, KA_DBG, KA_WS = [8 * i for i in range(13)]

NEGLOG2E = 0xbfb8aa3b
EPS = 0x3727c5ac

H1_BASE = 0
HB_BASE = 65536
ST_BASE = 81920
LDS_GEMM = 90112

V_TID = 0
V_LANE16 = 1
V_HBR = 2
V_HBW = 3
V_H1W = 4
V_STW = 5
V_STR = 6
V_XOFF = 7
V_T = 8
V_B = 64
V_RING = 128
V_ACC = 192
V_ACC2 = 208
V_X = 224
V_PK = 240
V_MISC = 248

S_WAVE = 3
S_XSRD = 8
S_WSRD = 12
S_OSRD = 16
S_DSRD = 20
S_WOFF = 24
S_T0 = 25
S_T1 = 26
S_T2 = 27
S_T3 = 28
S_RT = 29
S_B = 30
S_TILE = 31
S_C0 = 32


class WStream:
    DEPTH = 16

    def __init__(self, a, total):
        self.a = a
        self.total = total
        self.issued = 0
        self.used = 0

    def issue(self):
        a = self.a
        if self.issued >= self.total:
            return
        f = self.issued
        slot = V_RING + 4 * (f % self.DEPTH)
        a(f'buffer_load_dwordx4 {vr(slot, 4)}, v{V_LANE16}, {sr(S_WSRD, 4)}, s{S_WOFF} offen offset:{(f % 4) * 1024}')
        if f % 4 == 3:
            a(f's_add_u32 s{S_WOFF}, s{S_WOFF}, 4096')
        self.issued += 1

    def prefetch(self):
        while self.issued < min(self.total, self.used + self.DEPTH):
            self.issue()

    def cur(self):
        return V_RING + 4 * (self.used % self.DEPTH)

    def advance(self):
        self.used += 1
        self.issue()


def mfma(a, acc, A, B, first):
    c = '0' if first else vr(acc, 16)
    a(f'v_mfma_f32_32x32x16_bf16 {vr(acc, 16)}, {vr(A, 4)}, {vr(B, 4)}, {c}')


def prologue(a, nwg, wbase, wstride, extra_ptrs=()):
    a(f's_cmp_ge_u32 s2, {nwg}')
    a('s_cbranch_scc1 L_exit_%s' % a.kname)
    a(f's_load_dwordx2 s[4:5], s[0:1], {KA_X}')
    a(f's_load_dwordx2 s[6:7], s[0:1], {KA_WS}')
    a(f's_load_dwordx2 s[34:35], s[0:1], {KA_OUT}')
    a(f's_load_dwordx2 s[36:37], s[0:1], {KA_DW}')
    a(f'v_and_b32 v{V_T}, 63, v0')
    a(f'v_lshrrev_b32 v{V_T+1}, 6, v0')
    a(f'v_lshlrev_b32 v{V_LANE16}, 4, v{V_T}')
    a(f'v_readfirstlane_b32 s{S_WAVE}, v{V_T+1}')
    a(f'v_and_b32 v{V_T+2}, 31, v{V_T}')
    a(f'v_lshrrev_b32 v{V_T+3}, 5, v{V_T}')
    a(f'v_add_u32 v{V_HBR}, {HB_BASE}, v{V_LANE16}')
    a(f'v_lshlrev_b32 v{V_T+4}, 11, v{V_T+1}')
    a(f'v_add_u32 v{V_HBW}, v{V_HBR}, v{V_T+4}')
    a(f'v_lshlrev_b32 v{V_T+4}, 13, v{V_T+1}')
    a(f'v_add_u32 v{V_H1W}, v{V_LANE16}, v{V_T+4}')
    a(f'v_mul_u32_u24 v{V_STR}, 144, v{V_T+2}')
    a(f'v_add_u32 v{V_STR}, {ST_BASE}, v{V_STR}')
    a(f'v_lshlrev_b32 v{V_T+4}, 4, v{V_T+1}')
    a(f'v_lshlrev_b32 v{V_T+5}, 3, v{V_T+3}')
    a(f'v_add3_u32 v{V_STW}, v{V_STR}, v{V_T+4}, v{V_T+5}')
    a(f'v_lshlrev_b32 v{V_XOFF}, 9, v{V_T+2}')
    a(f'v_add_u32 v{V_XOFF}, v{V_XOFF}, v{V_T+5}')
    a(f's_mov_b32 s{S_RT}, s2')
    a(f's_cmp_ge_u32 s2, 125')
    a(f's_cselect_b32 s{S_B}, 1, 0')
    a(f's_mul_i32 s{S_T0}, s{S_B}, 125')
    a(f's_sub_u32 s{S_TILE}, s2, s{S_T0}')
    a.waitcnt(lgkm=0)
    for srd, lo, nbytes in ((S_XSRD, 4, 4096000), (S_WSRD, 6, WS_BYTES), (S_OSRD, 34, 4096000), (S_DSRD, 36, 2560)):
        a(f's_mov_b32 s{srd}, s{lo}')
        a(f's_and_b32 s{srd+1}, s{lo+1}, 0xffff')
        a(f's_mov_b32 s{srd+2}, {nbytes}')
        a(f's_mov_b32 s{srd+3}, 0x00020000')
    a(f's_mul_i32 s{S_WOFF}, s{S_WAVE}, {wstride}')
    a(f's_add_u32 s{S_WOFF}, s{S_WOFF}, {wbase}')


def unpack8(a, src, dst):
    for i in range(8):
        a(f'v_lshlrev_b32 v{dst+2*i}, 16, v{src+i}')
        a(f'v_and_b32 v{dst+2*i+1}, 0xffff0000, v{src+i}')


def pack8(a, src, dst):
    for i in range(8):
        a(f'v_cvt_pk_bf16_f32 v{dst+i}, v{src+2*i}, v{src+2*i+1}')


def ln_stats(a, xv):
    T = V_T
    a(f'v_add_f32 v{T}, v{xv}, v{xv+1}')
    a(f'v_add_f32 v{T+1}, v{xv+2}, v{xv+3}')
    for i in range(4, 16, 2):
        a(f'v_add_f32 v{T}, v{T}, v{xv+i}')
        a(f'v_add_f32 v{T+1}, v{T+1}, v{xv+i+1}')
    a(f'v_add_f32 v{T}, v{T}, v{T+1}')
    a(f'v_mul_f32 v{T}, 0x3d800000, v{T}')
    for i in range(16):
        a(f'v_sub_f32 v{T+2+(i%4)}, v{xv+i}, v{T}')
        if i < 2:
            a(f'v_mul_f32 v{T+6+i}, v{T+2+(i%4)}, v{T+2+(i%4)}')
        else:
            a(f'v_fma_f32 v{T+6+(i%2)}, v{T+2+(i%4)}, v{T+2+(i%4)}, v{T+6+(i%2)}')
    a(f'v_add_f32 v{T+1}, v{T+6}, v{T+7}')
    a(f'ds_write_b64 v{V_STW}, v[{T}:{T+1}]')
    a.waitcnt(lgkm=0)
    a.barrier()
    P = V_B
    for i in range(8):
        a(f'ds_read_b128 {vr(P+4*i, 4)}, v{V_STR} offset:{16*i}')
    a(f'v_add_f32 v{T}, v{P}, v{P+2}')
    a(f'v_add_f32 v{T+1}, v{P+4}, v{P+6}')
    for i in range(4, 16, 2):
        a(f'v_add_f32 v{T}, v{T}, v{P+2*i}')
        a(f'v_add_f32 v{T+1}, v{T+1}, v{P+2*i+2}')
    a(f'v_add_f32 v{T}, v{T}, v{T+1}')
    a(f'v_mul_f32 v{T}, 0x3d800000, v{T}')
    a(f'v_add_f32 v{T+1}, v{P+1}, v{P+3}')
    a(f'v_add_f32 v{T+2}, v{P+5}, v{P+7}')
    for i in range(4, 16, 2):
        a(f'v_add_f32 v{T+1}, v{T+1}, v{P+2*i+1}')
        a(f'v_add_f32 v{T+2}, v{T+2}, v{P+2*i+3}')
    a(f'v_add_f32 v{T+1}, v{T+1}, v{T+2}')
    for i in range(16):
        a(f'v_sub_f32 v{T+4+(i%4)}, v{P+2*i}, v{T}')
        if i < 2:
            a(f'v_mul_f32 v{T+2+i}, v{T+4+(i%4)}, v{T+4+(i%4)}')
        else:
            a(f'v_fma_f32 v{T+2+(i%2)}, v{T+4+(i%4)}, v{T+4+(i%4)}, v{T+2+(i%2)}')
    a(f'v_add_f32 v{T+2}, v{T+2}, v{T+3}')
    a(f'v_mov_b32 v{T+3}, 0x41800000')
    a(f'v_fma_f32 v{T+1}, v{T+2}, v{T+3}, v{T+1}')
    a(f'v_mul_f32 v{T+1}, 0x3b800000, v{T+1}')
    a(f'v_cvt_pk_bf16_f32 v{T+2}, v{T}, v{T+1}')
    a(f'v_lshlrev_b32 v{T}, 16, v{T+2}')
    a(f'v_and_b32 v{T+1}, 0xffff0000, v{T+2}')
    a(f'v_add_f32 v{T+1}, 0x{EPS:08x}, v{T+1}')
    a(f'v_cvt_pk_bf16_f32 v{T+1}, v{T+1}, v{T+1}')
    a(f'v_lshlrev_b32 v{T+1}, 16, v{T+1}')
    a(f'v_sqrt_f32 v{T+1}, v{T+1}')
    a(f'v_cvt_pk_bf16_f32 v{T+1}, v{T+1}, v{T+1}')
    a(f'v_lshlrev_b32 v{T+1}, 16, v{T+1}')
    a(f'v_rcp_f32 v{T+1}, v{T+1}')
    D = T + 2
    for i in range(16):
        a(f'v_sub_f32 v{D+i}, v{xv+i}, v{T}')
    pack8(a, D, V_PK)
    unpack8(a, V_PK, D)
    for i in range(16):
        a(f'v_mul_f32 v{D+i}, v{D+i}, v{T+1}')
    pack8(a, D, V_PK)


def gather(a):
    a(f'ds_write_b128 v{V_HBW}, {vr(V_PK, 4)}')
    a(f'ds_write_b128 v{V_HBW}, {vr(V_PK+4, 4)} offset:1024')
    a.waitcnt(lgkm=0)
    a.barrier()
    for ks in range(16):
        a(f'ds_read_b128 {vr(V_B+4*ks, 4)}, v{V_HBR} offset:{ks*1024}')


def silu16(a, acc, dst_pk):
    Z = V_T
    E = V_T + 16
    PKT = V_T + 32
    pack8(a, acc, PKT)
    unpack8(a, PKT, Z)
    for i in range(16):
        a(f'v_mul_f32 v{E+i}, 0x{NEGLOG2E:08x}, v{Z+i}')
    for i in range(16):
        a(f'v_exp_f32 v{E+i}, v{E+i}')
    for i in range(16):
        a(f'v_add_f32 v{E+i}, 1.0, v{E+i}')
    for i in range(16):
        a(f'v_rcp_f32 v{E+i}, v{E+i}')
    for i in range(16):
        a(f'v_mul_f32 v{Z+i}, v{Z+i}, v{E+i}')
    pack8(a, Z, dst_pk)


def residual(a, acc, half):
    T = V_T
    pack8(a, acc, V_PK)
    unpack8(a, V_PK, T)
    for i in range(16):
        if half:
            a(f'v_fma_f32 v{T+i}, v{T+i}, 0.5, v{V_X+i}')
        else:
            a(f'v_add_f32 v{T+i}, v{T+i}, v{V_X+i}')
    pack8(a, T, V_PK)
    unpack8(a, V_PK, V_X)


def ffn(a, ws):
    for t in range(4):
        acc = V_ACC if t % 2 == 0 else V_ACC2
        for ks in range(16):
            mfma(a, acc, ws.cur(), V_B + 4 * ks, ks == 0)
            ws.advance()
        silu16(a, acc, V_PK)
        a(f'ds_write_b128 v{V_H1W}, {vr(V_PK, 4)} offset:{H1_BASE + (2*t)*1024}')
        a(f'ds_write_b128 v{V_H1W}, {vr(V_PK+4, 4)} offset:{H1_BASE + (2*t+1)*1024}')
    a.waitcnt(lgkm=0)
    a.barrier()
    RD = 8
    for ks in range(RD - 1):
        a(f'ds_read_b128 {vr(V_B+4*(ks%RD), 4)}, v{V_LANE16} offset:{H1_BASE + ks*1024}')
    for ks in range(64):
        nx = ks + RD - 1
        if nx < 64:
            a(f'ds_read_b128 {vr(V_B+4*(nx%RD), 4)}, v{V_LANE16} offset:{H1_BASE + nx*1024}')
        mfma(a, V_ACC, ws.cur(), V_B + 4 * (ks % RD), ks == 0)
        ws.advance()


def store_pk(a, soff_reg):
    a(f'buffer_store_dwordx4 {vr(V_PK, 4)}, v{V_LANE16}, {sr(S_WSRD, 4)}, s{soff_reg} offen')
    a(f'buffer_store_dwordx4 {vr(V_PK+4, 4)}, v{V_LANE16}, {sr(S_WSRD, 4)}, s{soff_reg} offen offset:1024')


def frag_off(a, dst, base):
    a(f's_lshl_b32 s{dst}, s{S_RT}, 14')
    a(f's_lshl_b32 s{S_T3}, s{S_WAVE}, 11')
    a(f's_add_u32 s{dst}, s{dst}, s{S_T3}')
    a(f's_add_u32 s{dst}, s{dst}, {base}')


def kernel_begin(a, kname):
    a.kname = kname
    a.reset_state()
    a.out.append(f'.globl {kname}')
    a.out.append('.p2align 8')
    a.out.append(f'.type {kname},@function')
    a.label(kname)


def kernel_end(a):
    a.label(f'L_exit_{a.kname}')
    a.raw('s_endpgm')


def gen_k0(a):
    kernel_begin(a, 'k0_kernel')
    mats = [
        (KA_FF1A, 256, 1024, WK1, WK1_STRIDE, 'hi4', 0),
        (KA_FF1B, 1024, 256, WK1, WK1_STRIDE, 'nt', 64),
        (KA_QKV, 256, 768, WK1, WK1_STRIDE, 'lo8', 128),
        (KA_WO, 256, 256, WK3, WK3_STRIDE, 'nt', 0),
        (KA_PW1, 256, 512, WK3, WK3_STRIDE, 'lo8', 16),
        (KA_PW2, 256, 256, WK4, WK4_STRIDE, 'nt', 0),
        (KA_FF2A, 256, 1024, WK4, WK4_STRIDE, 'hi4', 16),
        (KA_FF2B, 1024, 256, WK4, WK4_STRIDE, 'nt', 80),
    ]
    a(f's_load_dwordx2 s[6:7], s[0:1], {KA_WS}')
    a('v_and_b32 v1, 63, v0')
    a('v_lshrrev_b32 v2, 6, v0')
    a('v_readfirstlane_b32 s3, v2')
    a('v_and_b32 v3, 31, v1')
    a('v_lshrrev_b32 v4, 5, v1')
    a('v_lshlrev_b32 v5, 4, v1')
    start = 0
    for mi, (ka, K, N, dbase, dstride, mode, idx0) in enumerate(mats):
        nks = K // 16
        nfr = nks * (N // 32)
        nwg = nfr // 4
        a(f's_cmp_lt_u32 s2, {start + nwg}')
        a(f's_cbranch_scc1 L_k0_m{mi}')
        start += nwg
    a('s_branch L_exit_k0_kernel')
    start = 0
    for mi, (ka, K, N, dbase, dstride, mode, idx0) in enumerate(mats):
        nks = K // 16
        nfr = nks * (N // 32)
        nwg = nfr // 4
        lg = nks.bit_length() - 1
        a.label(f'L_k0_m{mi}')
        a(f's_load_dwordx2 s[4:5], s[0:1], {ka}')
        a(f's_sub_u32 s20, s2, {start}')
        a('s_lshl_b32 s20, s20, 2')
        a('s_add_u32 s20, s20, s3')
        a(f's_and_b32 s21, s20, {nks - 1}')
        a(f's_lshr_b32 s22, s20, {lg}')
        a('v_lshlrev_b32 v6, 2, v4')
        a('s_lshl_b32 s23, s21, 4')
        a('v_add_u32 v6, s23, v6')
        a(f'v_mul_u32_u24 v6, {N}, v6') if N <= 64 else None
        if N > 64:
            a(f's_movk_i32 s24, {N}')
            a('v_mul_lo_u32 v6, v6, s24')
        a('s_lshl_b32 s23, s22, 5')
        a('v_add3_u32 v6, v6, s23, v3')
        a('v_lshlrev_b32 v6, 1, v6')
        if mode == 'hi4':
            a('s_lshr_b32 s25, s22, 2')
            a('s_and_b32 s26, s22, 3')
            a('s_lshl_b32 s26, s26, 4')
        elif mode == 'nt':
            a('s_mov_b32 s25, s22')
            a('s_mov_b32 s26, 0')
        else:
            a('s_and_b32 s25, s22, 7')
            a('s_lshr_b32 s26, s22, 3')
            a('s_lshl_b32 s26, s26, 4')
        a(f's_mul_i32 s25, s25, {dstride}')
        a('s_add_u32 s26, s26, s21')
        a(f's_add_u32 s26, s26, {idx0}')
        a('s_lshl_b32 s26, s26, 10')
        a('s_add_u32 s25, s25, s26')
        a(f's_add_u32 s25, s25, {dbase}')
        a.waitcnt(lgkm=0)
        a('s_mov_b32 s8, s4')
        a('s_and_b32 s9, s5, 0xffff')
        a(f's_mov_b32 s10, {K * N * 2}')
        a('s_mov_b32 s11, 0x00020000')
        a('s_mov_b32 s12, s6')
        a('s_and_b32 s13, s7, 0xffff')
        a(f's_mov_b32 s14, {WS_BYTES}')
        a('s_mov_b32 s15, 0x00020000')
        for j in range(8):
            off = (8 * (j >> 2) + (j & 3)) * N * 2
            a(f's_mov_b32 s{27 + j}, {off}')
        for j in range(8):
            a(f'buffer_load_ushort v{8 + j}, v6, s[8:11], s{27 + j} offen')
        for k in range(4):
            a(f'v_lshl_or_b32 v{16 + k}, v{9 + 2*k}, 16, v{8 + 2*k}')
        a('buffer_store_dwordx4 v[16:19], v5, s[12:15], s25 offen')
        a('s_branch L_exit_k0_kernel')
        start += nwg
    kernel_end(a)
    return start


def gen_k1(a):
    kernel_begin(a, 'k1_kernel')
    prologue(a, 250, WK1, WK1_STRIDE)
    ws = WStream(a, 176)
    a(f's_lshl_b32 s{S_T0}, s{S_RT}, 14')
    a(f's_lshl_b32 s{S_T1}, s{S_WAVE}, 6')
    a(f's_add_u32 s{S_T0}, s{S_T0}, s{S_T1}')
    for g in range(4):
        a(f'buffer_load_dwordx2 {vr(V_PK+2*g, 2)}, v{V_XOFF}, {sr(S_XSRD, 4)}, s{S_T0} offen offset:{16*g}')
    ws.prefetch()
    unpack8(a, V_PK, V_X)
    ln_stats(a, V_X)
    gather(a)
    ffn(a, ws)
    residual(a, V_ACC, True)
    frag_off(a, S_T0, X1)
    store_pk(a, S_T0)
    ln_stats(a, V_X)
    gather(a)
    a(f's_lshl_b32 s{S_T0}, s{S_B}, 2')
    a(f's_lshr_b32 s{S_T1}, s{S_WAVE}, 1')
    a(f's_add_u32 s{S_T0}, s{S_T0}, s{S_T1}')
    a(f's_mul_i32 s{S_T0}, s{S_T0}, 125')
    a(f's_add_u32 s{S_T0}, s{S_T0}, s{S_TILE}')
    a(f's_lshl_b32 s{S_T0}, s{S_T0}, 12')
    a(f's_and_b32 s{S_T1}, s{S_WAVE}, 1')
    a(f's_lshl_b32 s{S_T1}, s{S_T1}, 11')
    a(f's_add_u32 s{S_T0}, s{S_T0}, s{S_T1}')
    for part, base in enumerate((QF, KF, VF)):
        acc = V_ACC if part % 2 == 0 else V_ACC2
        for ks in range(16):
            if part < 2:
                mfma(a, acc, ws.cur(), V_B + 4 * ks, ks == 0)
            else:
                mfma(a, acc, V_B + 4 * ks, ws.cur(), ks == 0)
            ws.advance()
        pack8(a, acc, V_PK)
        a(f's_add_u32 s{S_T1}, s{S_T0}, {base}')
        store_pk(a, S_T1)
    kernel_end(a)


def gen_k3(a):
    kernel_begin(a, 'k3_kernel')
    prologue(a, 250, WK3, WK3_STRIDE)
    ws = WStream(a, 48)
    frag_off(a, S_T0, ATT)
    a(f'buffer_load_dwordx4 {vr(V_PK, 4)}, v{V_LANE16}, {sr(S_WSRD, 4)}, s{S_T0} offen')
    a(f'buffer_load_dwordx4 {vr(V_PK+4, 4)}, v{V_LANE16}, {sr(S_WSRD, 4)}, s{S_T0} offen offset:1024')
    frag_off(a, S_T1, X1)
    a(f'buffer_load_dwordx4 {vr(V_MISC, 4)}, v{V_LANE16}, {sr(S_WSRD, 4)}, s{S_T1} offen')
    a(f'buffer_load_dwordx4 {vr(V_MISC+4, 4)}, v{V_LANE16}, {sr(S_WSRD, 4)}, s{S_T1} offen offset:1024')
    ws.prefetch()
    gather(a)
    unpack8(a, V_MISC, V_X)
    for ks in range(16):
        mfma(a, V_ACC, ws.cur(), V_B + 4 * ks, ks == 0)
        ws.advance()
    residual(a, V_ACC, False)
    frag_off(a, S_T0, X2)
    store_pk(a, S_T0)
    ln_stats(a, V_X)
    gather(a)
    for part in range(2):
        acc = V_ACC if part == 0 else V_ACC2
        for ks in range(16):
            mfma(a, acc, ws.cur(), V_B + 4 * ks, ks == 0)
            ws.advance()
    A_ = V_T
    Bv = V_T + 16
    pack8(a, V_ACC, V_PK)
    unpack8(a, V_PK, A_)
    pack8(a, V_ACC2, V_PK)
    unpack8(a, V_PK, Bv)
    for i in range(16):
        a(f'v_mul_f32 v{Bv+i}, 0x{NEGLOG2E:08x}, v{Bv+i}')
    for i in range(16):
        a(f'v_exp_f32 v{Bv+i}, v{Bv+i}')
    for i in range(16):
        a(f'v_add_f32 v{Bv+i}, 1.0, v{Bv+i}')
    for i in range(16):
        a(f'v_rcp_f32 v{Bv+i}, v{Bv+i}')
    pack8(a, Bv, V_PK)
    unpack8(a, V_PK, Bv)
    for i in range(16):
        a(f'v_mul_f32 v{A_+i}, v{A_+i}, v{Bv+i}')
    pack8(a, A_, V_PK)
    frag_off(a, S_T0, GG)
    store_pk(a, S_T0)
    kernel_end(a)


def gen_k4(a):
    kernel_begin(a, 'k4_kernel')
    prologue(a, 250, WK4, WK4_STRIDE)
    ws = WStream(a, 144)
    frag_off(a, S_T1, X2)
    a(f'buffer_load_dwordx4 {vr(V_MISC, 4)}, v{V_LANE16}, {sr(S_WSRD, 4)}, s{S_T1} offen')
    a(f'buffer_load_dwordx4 {vr(V_MISC+4, 4)}, v{V_LANE16}, {sr(S_WSRD, 4)}, s{S_T1} offen offset:1024')
    GL = V_B
    DWR = V_RING - 24
    T = V_T
    a(f'v_and_b32 v{T}, 31, v0')
    a(f'v_lshrrev_b32 v{T+1}, 5, v0')
    a(f'v_and_b32 v{T+1}, 1, v{T+1}')
    a(f's_lshl_b32 s{S_T0}, s{S_TILE}, 5')
    a(f'v_add_u32 v{T}, s{S_T0}, v{T}')
    a(f's_mul_i32 s{S_T1}, s{S_B}, {125 * 16384}')
    a(f's_lshl_b32 s{S_T2}, s{S_WAVE}, 11')
    a(f's_add_u32 s{S_T1}, s{S_T1}, s{S_T2}')
    a(f's_add_u32 s{S_T1}, s{S_T1}, {GG}')
    a(f'v_lshlrev_b32 v{T+1}, 9, v{T+1}')
    a(f's_movk_i32 s{S_T2}, 4000')
    for i in range(5):
        tt = T + 2
        a(f'v_add_u32 v{tt}, {i - 2}, v{T}')
        a(f'v_lshrrev_b32 v{tt+1}, 5, v{tt}')
        a(f'v_lshlrev_b32 v{tt+1}, 14, v{tt+1}')
        a(f'v_and_b32 v{tt+2}, 31, v{tt}')
        a(f'v_lshlrev_b32 v{tt+2}, 4, v{tt+2}')
        a(f'v_add3_u32 v{tt+1}, v{tt+1}, v{tt+2}, v{T+1}')
        a(f'v_cmp_gt_u32 vcc, s{S_T2}, v{tt}')
        a(f'v_mov_b32 v{tt+2}, 0x7f000000')
        a(f'v_cndmask_b32 v{V_T + 8 + i}, v{tt+2}, v{tt+1}, vcc')
    for i in range(5):
        for fi in range(2):
            a(f'buffer_load_dwordx4 {vr(GL + 8*i + 4*fi, 4)}, v{V_T + 8 + i}, {sr(S_WSRD, 4)}, s{S_T1} offen offset:{fi*1024}')
    DW = V_B + 40
    dwregs = [V_B + 40 + k for k in range(24)] + [V_ACC + k for k in range(16)]
    a(f'v_lshrrev_b32 v{T+13}, 6, v{T+1}')
    a(f's_lshl_b32 s{S_T0}, s{S_WAVE}, 6')
    for i in range(5):
        for g in range(4):
            r = dwregs[(i * 4 + g) * 2]
            a(f'buffer_load_dwordx2 {vr(r, 2)}, v{T+13}, {sr(S_DSRD, 4)}, s{S_T0} offen offset:{i*512 + 16*g}')
    ws.prefetch()
    unpack8(a, V_MISC, V_X)
    C = V_ACC2
    H = V_T
    Wd = V_T + 16
    PT = V_T + 32
    for i in range(5):
        unpack8(a, GL + 8 * i, H)
        for k in range(8):
            r = dwregs[i * 8 + k]
            a(f'v_lshlrev_b32 v{Wd+2*k}, 16, v{r}')
            a(f'v_and_b32 v{Wd+2*k+1}, 0xffff0000, v{r}')
        for k in range(16):
            a(f'v_mul_f32 v{H+k}, v{H+k}, v{Wd+k}')
        pack8(a, H, PT)
        if i == 0:
            unpack8(a, PT, C)
        else:
            unpack8(a, PT, H)
            for k in range(16):
                a(f'v_add_f32 v{C+k}, v{C+k}, v{H+k}')
            pack8(a, C, PT)
            unpack8(a, PT, C)
    silu16(a, C, V_PK)
    gather(a)
    for ks in range(16):
        mfma(a, V_ACC, ws.cur(), V_B + 4 * ks, ks == 0)
        ws.advance()
    residual(a, V_ACC, False)
    ln_stats(a, V_X)
    gather(a)
    ffn(a, ws)
    residual(a, V_ACC, True)
    ln_stats(a, V_X)
    a(f's_lshl_b32 s{S_T0}, s{S_RT}, 14')
    a(f's_lshl_b32 s{S_T1}, s{S_WAVE}, 6')
    a(f's_add_u32 s{S_T0}, s{S_T0}, s{S_T1}')
    for g in range(4):
        a(f'buffer_store_dwordx2 {vr(V_PK+2*g, 2)}, v{V_XOFF}, {sr(S_OSRD, 4)}, s{S_T0} offen offset:{16*g}')
    kernel_end(a)


from gen_attn import gen_k2, LDS_ATT


def descriptor(kname, nv=256, ns=102, acc=256):
    return f""".amdhsa_kernel {kname}
  .amdhsa_next_free_vgpr {nv}
  .amdhsa_next_free_sgpr {ns}
  .amdhsa_accum_offset {acc}
  .amdhsa_group_segment_fixed_size 0
  .amdhsa_kernarg_size 104
  .amdhsa_user_sgpr_count 2
  .amdhsa_user_sgpr_kernarg_segment_ptr 1
  .amdhsa_system_sgpr_workgroup_id_x 1
.end_amdhsa_kernel
"""


def main():
    a = Asm()
    nk0 = gen_k0(a)
    gen_k1(a)
    gen_k2(a)
    gen_k3(a)
    gen_k4(a)
    ref = open(f'cdna_kernels/{NAME}.s.ref').read().split('\n')
    head = [l for l in ref if l.startswith(';') and '@launch' not in l and 'Override launch' not in l and 'grid=ceil' not in l]
    hdr = '\n'.join(head) + '\n'
    hdr += f'; @launch kernel=k0_kernel grid=({nk0},1,1) block=(256,1,1) lds=0\n'
    hdr += f'; @launch kernel=k1_kernel grid=(250,1,1) block=(512,1,1) lds={LDS_GEMM}\n'
    hdr += f'; @launch kernel=k2_kernel grid=(256,1,1) block=(512,1,1) lds={LDS_ATT}\n'
    hdr += f'; @launch kernel=k3_kernel grid=(250,1,1) block=(512,1,1) lds={LDS_GEMM}\n'
    hdr += f'; @launch kernel=k4_kernel grid=(250,1,1) block=(512,1,1) lds={LDS_GEMM}\n'
    body = '.amdgcn_target "amdgcn-amd-amdhsa--gfx950"\n.text\n' + a.text()
    tail = '.section .rodata,"a"\n'
    for k, nv in (('k0_kernel', 32), ('k1_kernel', 256), ('k2_kernel', 256), ('k3_kernel', 256), ('k4_kernel', 256)):
        tail += '.p2align 6\n' + descriptor(k, nv, 102, nv)
    open(f'cdna_kernels/{NAME}.s', 'w').write(hdr + body + tail)
    print('written', len(hdr + body + tail), 'bytes')


if __name__ == '__main__':
    main()
```
